```python
import torch

def _softmax(x, axis=-1):
    return torch.softmax(x, dim=axis)

def _gelu(x):
    return torch.nn.functional.gelu(x, approximate='tanh')

def _silu(x):
    return torch.nn.functional.silu(x)

def _sigmoid(x):
    return torch.sigmoid(x)

def _layernorm(x, axis=-1, eps=1e-05):
    m = x.mean(dim=axis, keepdim=True)
    v = x.var(dim=axis, keepdim=True, unbiased=False)
    return (x - m) / torch.sqrt(v + eps)

def _scatter_add(tgt, idx, src, axis=0):
    return tgt.clone().index_add_(axis, idx, src)

def _segment_sum(src, seg, n):
    out = torch.zeros((n,) + src.shape[1:], dtype=src.dtype)
    return out.index_add_(0, seg, src)

def _pad(x, pw):
    flat = tuple((v for pair in reversed(pw) for v in pair))
    return torch.nn.functional.pad(x, flat)
kernel_name = 'interleave_layers__memory_aug_recurrent_mem_tr__glu_gated_reglu__prompt'

def setup_inputs():

    _w = lambda a: (lambda t: t.to(torch.bfloat16) if t.is_floating_point() else t)(torch.as_tensor(a))

    def _A_setup():
        B, S, Dm = (1, 2048, 512)
        H, Dh = (32, 128)
        M, seg = (8, 32)
        seg = min(seg, S)
        S = S // seg * seg
        return {'x': _w((lambda *s: torch.randn(*s, dtype=torch.bfloat16) * 0.05)(B, S, Dm)), 'mem0': _w((lambda *s: torch.randn(*s, dtype=torch.bfloat16) * 0.2)(B, M, Dm)), 'Wq': _w((lambda *s: torch.randn(*s, dtype=torch.bfloat16) * 1.6)(Dm, H, Dh) * Dm ** (-0.5)), 'Wk': _w((lambda *s: torch.randn(*s, dtype=torch.bfloat16) * 1.6)(Dm, H, Dh) * Dm ** (-0.5)), 'Wv': _w((lambda *s: torch.randn(*s, dtype=torch.bfloat16) * 0.2)(Dm, H, Dh) * Dm ** (-0.5)), 'Wo': _w((lambda *s: torch.randn(*s, dtype=torch.bfloat16) * 0.2)(H, Dh, Dm) * (H * Dh) ** (-0.5)), 'seg_len': seg}
    _A_in = _A_setup()

    def _B_setup():
        B, S, D, F = (1, 2048, 512, 1792)
        return {'x': _w((lambda *s: torch.randn(*s, dtype=torch.bfloat16) * 0.05)(B, S, D)), 'W_gate': _w((lambda *s: torch.randn(*s, dtype=torch.bfloat16) * 0.2)(D, F) * (2.0 / D) ** 0.5), 'W_up': _w((lambda *s: torch.randn(*s, dtype=torch.bfloat16) * 0.2)(D, F) * (2.0 / D) ** 0.5), 'W_down': _w((lambda *s: torch.randn(*s, dtype=torch.bfloat16) * 0.2)(F, D) * (1.0 / F) ** 0.5)}
    _B_in = _B_setup()
    return {'A_x': _A_in['x'], 'A_mem0': _A_in['mem0'], 'A_Wq': _A_in['Wq'], 'A_Wk': _A_in['Wk'], 'A_Wv': _A_in['Wv'], 'A_Wo': _A_in['Wo'], 'A_seg_len': _A_in['seg_len'], 'B_x': _B_in['x'], 'B_W_gate': _B_in['W_gate'], 'B_W_up': _B_in['W_up'], 'B_W_down': _B_in['W_down']}

def reference(A_x, A_mem0, A_Wq, A_Wk, A_Wv, A_Wo, A_seg_len, B_x, B_W_gate, B_W_up, B_W_down):

    def _A_ref(x, mem0, Wq, Wk, Wv, Wo, seg_len):
        B, S, Dm = x.shape
        H, Dh = (Wq.shape[1], Wq.shape[2])
        M = mem0.shape[1]
        scale = Dh ** (-0.5)
        n_seg = S // seg_len
        L = M + seg_len
        idx = torch.arange(L)
        mask = (idx[:, None] < M) | (idx[:, None] >= idx[None, :])
        mem = mem0
        outs = []
        for s in range(n_seg):
            xs = x[:, s * seg_len:(s + 1) * seg_len, :].clone()
            h = torch.concatenate([mem, xs], axis=1)
            q = torch.einsum('btd,dhe->bhte', h, Wq)
            k = torch.einsum('btd,dhe->bhte', h, Wk)
            v = torch.einsum('btd,dhe->bhte', h, Wv)
            scores = torch.einsum('bhqe,bhke->bhqk', q, k) * scale
            scores = torch.where(mask[None, None], scores, -1000000000.0)
            p = _softmax(scores, axis=-1)
            o = torch.einsum('bhqk,bhke->bhqe', p, v)
            o = torch.einsum('bhte,hed->btd', o, Wo)
            mem = o[:, :M, :].clone()
            outs.append(o[:, M:, :])
        return torch.concatenate(outs, axis=1)

    def _B_ref(x, W_gate, W_up, W_down):
        gate = torch.einsum('bsd,df->bsf', x, W_gate)
        up = torch.einsum('bsd,df->bsf', x, W_up)
        gate = gate * (lambda x, dt: x.to(dt))(gate > 0, gate.dtype)
        h = gate * up
        return torch.einsum('bsf,fd->bsd', h, W_down)
    x = A_x
    x = x + _A_ref(_layernorm(x, axis=-1), A_mem0, A_Wq, A_Wk, A_Wv, A_Wo, A_seg_len)
    x = x + _B_ref(_layernorm(x, axis=-1), B_W_gate, B_W_up, B_W_down)
    x = x + _A_ref(_layernorm(x, axis=-1), A_mem0, A_Wq, A_Wk, A_Wv, A_Wo, A_seg_len)
    x = x + _B_ref(_layernorm(x, axis=-1), B_W_gate, B_W_up, B_W_down)
    return x
```

```python
class Asm:
    def __init__(self):
        self.lines = []
        self._uid = 0

    def e(self, s):
        self.lines.append("  " + s)

    def c(self, s):
        self.lines.append("  ; " + s)

    def lab(self, name):
        self.lines.append(name + ":")

    def uid(self, base):
        self._uid += 1
        return f"{base}_{self._uid}"

    def nop(self, n):
        while n > 0:
            k = min(n, 16)
            self.e(f"s_nop {k - 1}")
            n -= k

    def text(self):
        return "\n".join(self.lines) + "\n"

    def lanefn(self, vdst, f, vtmp, nbits=8, src="v0"):
        n = 1 << nbits
        f0 = f(0)
        add = [f(1 << b) - f0 for b in range(nbits)]
        xor = [f(1 << b) ^ f0 for b in range(nbits)]

        def ev_add(t):
            return f0 + sum(add[b] for b in range(nbits) if t >> b & 1)

        def ev_xor(t):
            r = f0
            for b in range(nbits):
                if t >> b & 1:
                    r ^= xor[b]
            return r

        if all(ev_add(t) == f(t) for t in range(n)):
            op, co = "v_add_u32", add
        elif all(ev_xor(t) == f(t) for t in range(n)):
            op, co = "v_xor_b32", xor
        else:
            raise ValueError("lanefn: map is neither additive nor xor-linear")
        self.e(f"v_mov_b32 {vdst}, {f0 & 0xffffffff:#x}")
        for b in range(nbits):
            if co[b] == 0:
                continue
            self.e(f"v_bfe_i32 {vtmp}, {src}, {b}, 1")
            self.e(f"v_and_b32 {vtmp}, {co[b] & 0xffffffff:#x}, {vtmp}")
            self.e(f"{op} {vdst}, {vdst}, {vtmp}")


def vr(base, n=1):
    return f"v{base}" if n == 1 else f"v[{base}:{base + n - 1}]"


def ar(base, n=1):
    return f"a{base}" if n == 1 else f"a[{base}:{base + n - 1}]"


def sr(base, n=1):
    return f"s{base}" if n == 1 else f"s[{base}:{base + n - 1}]"


class Alloc:
    def __init__(self, start, limit):
        self.n = start
        self.limit = limit

    def take(self, n=1, align=1):
        if n >= 2:
            align = max(align, 2)
        self.n = (self.n + align - 1) // align * align
        r = self.n
        self.n += n
        assert self.n <= self.limit, f"out of registers: {self.n} > {self.limit}"
        return r
```

```python
import sys
from asmlib import Asm, Alloc, vr, ar, sr

NAME = "interleave_layers__memory_aug_recurrent_mem_tr__glu_gated_reglu__prompt"

FLAGS = 0x0000000
FL_STRIDE = 0x40000
F_KV, F_KM, F_O = 0x00000, 0x08000, 0x10000
F_P3, F_H1, F_MID, F_P5, F_HIN = 0x18000, 0x1C000, 0x1D000, 0x21000, 0x23000
FLAG_BYTES = 2 * FL_STRIDE
POISON = 0x0100000
PO_STRIDE = 0x200000
PO_MEM, PO_PC = 0x0, 0x100000
POISON_BYTES = 2 * PO_STRIDE
LB0 = 0x1000000
L_STRIDE = 0x6000000
KX, VX, OB, P3, P5, MID = 0x0000000, 0x1000000, 0x2000000, 0x3000000, 0x4000000, 0x4800000
KM, VM, XIN, HIN, X1, H1 = 0x5000000, 0x5400000, 0x5800000, 0x5A00000, 0x5C00000, 0x5E00000
WS_BYTES = 0x10000000

S_WS, S_A, S_B, S_C, S_D = 4, 8, 12, 16, 20
P_X, P_MEM0, P_WQ, P_WK, P_WV, P_WO = 24, 26, 28, 30, 32, 34
P_WG, P_WU, P_WD, P_OUT, P_DBG, P_WS = 40, 42, 44, 46, 48, 50
S_L, S_F, S_IDX, S_S, S_STEP, S_END, S_W, S_PREF, S_SLOT = 52, 53, 54, 55, 56, 57, 58, 59, 60
S_T0, S_T1, S_T2, S_T3, S_T4, S_T5, S_T6, S_T7 = 61, 62, 63, 64, 65, 66, 67, 68
S_EX = 70
S_TO = 72
S_IDX2 = 73
S_NXT = 74
S_PO = 75
S_U0, S_U1, S_U2, S_U3, S_U4, S_U5 = 76, 77, 78, 79, 80, 81
S_MLO, S_MHI = 82, 84
S_FAST = 86
S_RET = 87

TIMEOUT = 1 << 19
LOG2E_SCALE = 0.08838834764831845 * 1.4426950408889634


def f32bits(x):
    import struct
    return struct.unpack("<I", struct.pack("<f", x))[0]


class K(Asm):
    def srd(self, s, ptr, nbytes):
        self.e(f"s_mov_b32 s{s}, s{ptr}")
        self.e(f"s_and_b32 s{s+1}, s{ptr+1}, 0xffff")
        self.e(f"s_mov_b32 s{s+2}, {nbytes:#x}")
        self.e(f"s_mov_b32 s{s+3}, 0x20000")

    def prologue(self, ngrid):
        self.e(f"s_cmp_ge_u32 s2, {ngrid}")
        self.e("s_cbranch_scc1 L_exit")
        self.e("s_load_dwordx16 s[24:39], s[0:1], 0")
        self.e("s_load_dwordx8 s[40:47], s[0:1], 64")
        self.e("s_load_dwordx4 s[48:51], s[0:1], 96")
        self.e("v_lshrrev_b32 v1, 6, v0")
        self.e("s_nop 0")
        self.e(f"v_readfirstlane_b32 s{S_W}, v1")
        self.e(f"s_mov_b32 s{S_TO}, 0")
        self.e("s_waitcnt lgkmcnt(0)")
        self.srd(S_WS, P_WS, WS_BYTES)

    def set_layer(self, l):
        self.e(f"s_mov_b32 s{S_L}, {LB0 + l * L_STRIDE:#x}")
        self.e(f"s_mov_b32 s{S_F}, {FLAGS + l * FL_STRIDE:#x}")
        self.e(f"s_mov_b32 s{S_PO}, {POISON + l * PO_STRIDE:#x}")

    def tick(self):
        self.e(f"s_add_u32 s{S_TO}, s{S_TO}, 1")
        self.e(f"s_cmp_gt_u32 s{S_TO}, {TIMEOUT:#x}")
        self.e("s_cbranch_scc1 L_exit")

    def poll(self, vfl, voff, soff, sleep=1):
        l = self.uid("L_poll")
        l2 = self.uid("L_pollok")
        self.lab(l)
        self.e(f"buffer_load_dword {vfl}, {voff}, {sr(S_WS,4)}, {soff} offen sc1")
        self.e("s_waitcnt vmcnt(0)")
        self.e(f"v_cmp_eq_u32 vcc, 0, {vfl}")
        self.e(f"s_cbranch_vccz {l2}")
        self.tick()
        if sleep:
            self.e(f"s_sleep {sleep}")
        self.e(f"s_branch {l}")
        self.lab(l2)

    def set_flag(self, vone, voff, soff):
        self.e(f"s_mov_b64 exec, 1")
        self.e(f"buffer_store_dword {vone}, {voff}, {sr(S_WS,4)}, {soff} offen sc1")
        self.e(f"s_mov_b64 exec, -1")

    def load_w32(self, srd, scol, stride, row0, nrows, dst, dorder, vsrc, vtr, vtr2):
        assert nrows % 16 == 0 and nrows <= 512
        per_wave = nrows // 16
        self.e("s_barrier")
        self.e(f"s_mul_i32 s{S_T0}, s{S_W}, {per_wave * 4 * stride}")
        self.e(f"s_add_u32 s{S_T0}, s{S_T0}, {scol}")
        self.e(f"s_add_u32 s{S_T0}, s{S_T0}, {row0 * stride}")
        self.e(f"s_mul_i32 s{S_T1}, s{S_W}, {per_wave * 1024}")
        self.e(f"s_mov_b32 s{S_T2}, 0")
        l = self.uid("L_wdma")
        self.lab(l)
        self.e(f"s_mov_b32 m0, s{S_T1}")
        self.e(f"s_add_u32 s{S_T1}, s{S_T1}, 1024")
        self.e(f"buffer_load_dwordx4 {vsrc}, {sr(srd,4)}, s{S_T0} offen lds")
        self.e(f"s_add_u32 s{S_T0}, s{S_T0}, {4 * stride}")
        self.e(f"s_add_u32 s{S_T2}, s{S_T2}, 1")
        self.e(f"s_cmp_lt_u32 s{S_T2}, {per_wave}")
        self.e(f"s_cbranch_scc1 {l}")
        self.e("s_waitcnt vmcnt(0)")
        self.e("s_barrier")
        for t in range(nrows // 16):
            for hf in range(2):
                off = t * 4096 + hf * (2048 if dorder else 1024)
                base = vtr
                if off >= 65536:
                    off -= 65536
                    base = vtr2
                self.e(f"ds_read_b64_tr_b16 {ar(dst + 4 * t + 2 * hf, 2)}, {base} offset:{off}")
            if t % 4 == 3:
                self.e("s_waitcnt lgkmcnt(0)")
        self.e("s_waitcnt lgkmcnt(0)")

    def w32_lane_tables(self, stride, dorder, vsrc, vtr, vtr2, vtmp):
        self.lanefn(vsrc, lambda t: 0 + (((t & 15) ^ (4 * ((t >> 4) & 3))) * 16), vtmp, nbits=6)
        self.lanefn(vtr2, lambda t: ((t >> 4) & 3) * stride, vtmp, nbits=6)
        self.e(f"v_add_u32 {vsrc}, {vsrc}, {vtr2}")

        def ftr(t):
            w, l = t >> 6, t & 63
            G, r, c = l >> 4, (l >> 2) & 3, l & 3
            h2 = G >> 1
            row = (4 * h2 if dorder else 8 * h2) + r
            piece = 4 * w + 2 * (G & 1) + (c >> 1)
            return row * 256 + ((piece ^ (4 * r)) * 16) + (c & 1) * 8
        self.lanefn(vtr, ftr, vtmp)
        self.e(f"v_add_u32 {vtr2}, 0x10000, {vtr}")


def role_R(k, kind):
    nparts = {"ln0": 0, "r3": 4, "r5": 2, "r5f": 2}[kind]
    A = Alloc(2, 256)
    vT = A.take()
    vPoff, vXoff, vXoff2, vRM, vFl, vFlo, vLw, vLr, vOne, vF = (A.take() for _ in range(10))
    vP = [A.take(16, 4) for _ in range(max(nparts, 1))]
    vX = A.take(8, 4)
    vE = A.take(16, 4)
    vD = A.take(16, 4)
    vS = A.take(4, 4)
    vS2 = A.take(4, 4)
    vH = A.take(8, 4)
    k.c(f"---- role R ({kind})")
    k.lanefn(f"v{vPoff}", lambda t: (t >> 6) * 4096 + ((t >> 3) & 7) * 256 + (t & 7) * 16, f"v{vT}")
    k.lanefn(f"v{vXoff}", lambda t: (16 * (t >> 6) + ((t >> 3) & 7)) * 512 + (t & 7) * 16, f"v{vT}")
    k.e(f"v_add_u32 v{vXoff2}, 4096, v{vXoff}")
    k.lanefn(f"v{vRM}", lambda t: (t & 7) * 1024 + (16 * (t >> 6) + ((t >> 3) & 7)) * 16, f"v{vT}")
    if kind == "r3":
        k.lanefn(f"v{vFl}", lambda t: (t >> 6) * 64 + (t & 15) * 4, f"v{vT}")
    elif kind in ("r5", "r5f"):
        k.lanefn(f"v{vFl}", lambda t: (t >> 6) * 32 + (t & 7) * 4, f"v{vT}")
    k.lanefn(f"v{vFlo}", lambda t: (t >> 6) * 16, f"v{vT}")
    k.lanefn(f"v{vLw}", lambda t: (t & 7) * 16 + (t >> 6) * 4, f"v{vT}")
    k.lanefn(f"v{vLr}", lambda t: (t & 7) * 16, f"v{vT}")
    k.e(f"v_mov_b32 v{vOne}, 1")
    if kind == "ln0":
        k.srd(S_B, P_X, 2048 * 512 * 2)
    if kind == "r5f":
        k.srd(S_C, P_OUT, 2048 * 512 * 2)
    loop = k.uid("L_R")
    k.lab(loop)
    k.e(f"s_lshl_b32 s{S_U0}, s{S_S}, 15")
    k.e(f"s_lshl_b32 s{S_T0}, s{S_IDX}, 7")
    k.e(f"s_add_u32 s{S_U0}, s{S_U0}, s{S_T0}")
    k.e(f"s_add_u32 s{S_U0}, s{S_U0}, s{S_L}")
    k.e(f"s_lshl_b32 s{S_U1}, s{S_S}, 15")
    k.e(f"s_lshl_b32 s{S_T0}, s{S_IDX}, 13")
    k.e(f"s_add_u32 s{S_U1}, s{S_U1}, s{S_T0}")
    if nparts:
        fin = F_P3 if kind == "r3" else F_P5
        fsh = 8 if kind == "r3" else 7
        k.e(f"s_lshl_b32 s{S_T0}, s{S_S}, {fsh}")
        k.e(f"s_add_u32 s{S_T0}, s{S_T0}, s{S_F}")
        k.e(f"s_add_u32 s{S_T0}, s{S_T0}, {fin:#x}")
        k.poll(f"v{vF}", f"v{vFl}", f"s{S_T0}")
        pb = P3 if kind == "r3" else P5
        k.e(f"s_lshl_b32 s{S_T0}, s{S_S}, {18 if kind == 'r3' else 17}")
        k.e(f"s_lshl_b32 s{S_T1}, s{S_IDX}, 14")
        k.e(f"s_add_u32 s{S_T0}, s{S_T0}, s{S_T1}")
        k.e(f"s_add_u32 s{S_T0}, s{S_T0}, s{S_L}")
        k.e(f"s_add_u32 s{S_T0}, s{S_T0}, {pb:#x}")
        for p in range(nparts):
            for m in range(2):
                for par in range(2):
                    k.e(f"buffer_load_dwordx4 {vr(vP[p] + 8*m + 4*par, 4)}, v{vPoff}, {sr(S_WS,4)}, s{S_T0} offen offset:{m*2048 + par*128} sc1")
            if p + 1 < nparts:
                k.e(f"s_add_u32 s{S_T0}, s{S_T0}, 0x10000")
    if kind == "ln0":
        k.e(f"buffer_load_dwordx4 {vr(vX,4)}, v{vRM}, {sr(S_B,4)}, s{S_U1} offen")
        k.e(f"buffer_load_dwordx4 {vr(vX+4,4)}, v{vRM}, {sr(S_B,4)}, s{S_U1} offen offset:128")
    else:
        xin = XIN if kind == "r3" else X1
        k.e(f"s_add_u32 s{S_T1}, s{S_U0}, {xin:#x}")
        k.e(f"buffer_load_dwordx4 {vr(vX,4)}, v{vXoff}, {sr(S_WS,4)}, s{S_T1} offen sc1")
        k.e(f"buffer_load_dwordx4 {vr(vX+4,4)}, v{vXoff2}, {sr(S_WS,4)}, s{S_T1} offen sc1")
    k.e("s_waitcnt vmcnt(0)")

    def unpack(dst, src):
        for i in range(8):
            k.e(f"v_lshlrev_b32 v{dst+2*i}, 16, v{src+i}")
            k.e(f"v_and_b32 v{dst+2*i+1}, 0xffff0000, v{src+i}")

    def pack(dst, src):
        for i in range(8):
            k.e(f"v_cvt_pk_bf16_f32 v{dst+i}, v{src+2*i}, v{src+2*i+1}")

    unpack(vE, vX)
    if nparts:
        for p in range(1, nparts):
            for i in range(8):
                k.e(f"v_pk_add_f32 {vr(vP[0]+2*i,2)}, {vr(vP[0]+2*i,2)}, {vr(vP[p]+2*i,2)}")
        pack(vH, vP[0])
        unpack(vD, vH)
        for i in range(8):
            k.e(f"v_pk_add_f32 {vr(vE+2*i,2)}, {vr(vE+2*i,2)}, {vr(vD+2*i,2)}")
        pack(vX, vE)
        if kind != "r5f":
            unpack(vE, vX)
    if kind == "r5f":
        k.e(f"buffer_store_dwordx4 {vr(vX,4)}, v{vRM}, {sr(S_C,4)}, s{S_U1} offen")
        k.e(f"buffer_store_dwordx4 {vr(vX+4,4)}, v{vRM}, {sr(S_C,4)}, s{S_U1} offen offset:128")
    else:
        xo = {"ln0": XIN, "r3": X1, "r5": L_STRIDE + XIN}[kind]
        ho = {"ln0": HIN, "r3": H1, "r5": L_STRIDE + HIN}[kind]
        fo = {"ln0": F_HIN, "r3": F_H1, "r5": FL_STRIDE + F_HIN}[kind]
        k.e(f"s_add_u32 s{S_T1}, s{S_U0}, {xo:#x}")
        k.e(f"buffer_store_dwordx4 {vr(vX,4)}, v{vXoff}, {sr(S_WS,4)}, s{S_T1} offen sc1")
        k.e(f"buffer_store_dwordx4 {vr(vX+4,4)}, v{vXoff2}, {sr(S_WS,4)}, s{S_T1} offen sc1")

        def rowsum(src, ldsoff):
            for i in range(4):
                k.e(f"v_pk_add_f32 {vr(vS2,2) if i == 0 else vr(vS2,2)}, {vr(src+4*i,2)}, {vr(src+4*i+2,2)}" if i == 0 else
                    f"v_pk_add_f32 {vr(vS2+2,2)}, {vr(src+4*i,2)}, {vr(src+4*i+2,2)}")
                if i:
                    k.e(f"v_pk_add_f32 {vr(vS2,2)}, {vr(vS2,2)}, {vr(vS2+2,2)}")
            k.e(f"v_add_f32 v{vS}, v{vS2}, v{vS2+1}")
            k.nop(2)
            k.e(f"v_add_f32_dpp v{vS}, v{vS}, v{vS} row_ror:8 row_mask:0xf bank_mask:0xf")
            k.e(f"v_mov_b32 v{vS+1}, v{vS}")
            k.nop(2)
            k.e(f"v_permlane16_swap_b32 v{vS}, v{vS+1}")
            k.nop(2)
            k.e(f"v_add_f32 v{vS}, v{vS}, v{vS+1}")
            k.e(f"v_mov_b32 v{vS+1}, v{vS}")
            k.nop(2)
            k.e(f"v_permlane32_swap_b32 v{vS}, v{vS+1}")
            k.nop(2)
            k.e(f"v_add_f32 v{vS}, v{vS}, v{vS+1}")
            k.e("s_mov_b64 exec, 0xff")
            k.e(f"ds_write_b32 v{vLw}, v{vS} offset:{ldsoff}")
            k.e("s_mov_b64 exec, -1")
            k.e("s_waitcnt lgkmcnt(0)")
            k.e("s_barrier")
            k.e(f"ds_read_b128 {vr(vS2,4)}, v{vLr} offset:{ldsoff}")
            k.e("s_waitcnt lgkmcnt(0)")
            k.e(f"v_pk_add_f32 {vr(vS2,2)}, {vr(vS2,2)}, {vr(vS2+2,2)}")
            k.e(f"v_add_f32 v{vS}, v{vS2}, v{vS2+1}")
            k.e(f"v_mul_f32 v{vS}, 0x3b000000, v{vS}")

        rowsum(vE, 0)
        k.e(f"v_mov_b32 v{vS+2}, v{vS}")
        for i in range(16):
            k.e(f"v_sub_f32 v{vD+i}, v{vE+i}, v{vS+2}")
        for i in range(8):
            k.e(f"v_pk_mul_f32 {vr(vD+2*i,2)}, {vr(vD+2*i,2)}, {vr(vD+2*i,2)}")
        rowsum(vD, 128)
        k.e(f"v_cvt_pk_bf16_f32 v{vS+1}, v{vS+2}, v{vS}")
        k.e(f"v_lshlrev_b32 v{vS+2}, 16, v{vS+1}")
        k.e(f"v_and_b32 v{vS}, 0xffff0000, v{vS+1}")
        k.e(f"v_add_f32 v{vS}, {f32bits(1e-5):#x}, v{vS}")
        k.e(f"v_cvt_pk_bf16_f32 v{vS}, v{vS}, v{vS}")
        k.e(f"v_lshlrev_b32 v{vS}, 16, v{vS}")
        k.e(f"v_sqrt_f32 v{vS}, v{vS}")
        k.nop(1)
        k.e(f"v_cvt_pk_bf16_f32 v{vS}, v{vS}, v{vS}")
        k.e(f"v_lshlrev_b32 v{vS}, 16, v{vS}")
        k.e(f"v_rcp_f32 v{vS}, v{vS}")
        for i in range(16):
            k.e(f"v_sub_f32 v{vD+i}, v{vE+i}, v{vS+2}")
        pack(vH, vD)
        unpack(vD, vH)
        for i in range(16):
            k.e(f"v_mul_f32 v{vD+i}, v{vD+i}, v{vS}")
        pack(vH, vD)
        k.e(f"s_add_u32 s{S_T1}, s{S_U0}, {ho:#x}")
        k.e(f"buffer_store_dwordx4 {vr(vH,4)}, v{vXoff}, {sr(S_WS,4)}, s{S_T1} offen sc1")
        k.e(f"buffer_store_dwordx4 {vr(vH+4,4)}, v{vXoff2}, {sr(S_WS,4)}, s{S_T1} offen sc1")
        k.e(f"s_lshl_b32 s{S_T0}, s{S_S}, 6")
        k.e(f"s_lshl_b32 s{S_T1}, s{S_IDX}, 2")
        k.e(f"s_add_u32 s{S_T0}, s{S_T0}, s{S_T1}")
        k.e(f"s_add_u32 s{S_T0}, s{S_T0}, s{S_F}")
        k.e(f"s_add_u32 s{S_T0}, s{S_T0}, {fo:#x}")
        k.e("s_waitcnt vmcnt(0)")
        k.set_flag(f"v{vOne}", f"v{vFlo}", f"s{S_T0}")
    k.e(f"s_add_u32 s{S_S}, s{S_S}, s{S_STEP}")
    k.e(f"s_cmp_lt_u32 s{S_S}, s{S_END}")
    k.e(f"s_cbranch_scc1 {loop}")


class GemmRegs:
    def __init__(self):
        A = self.A = Alloc(2, 256)
        (self.vT, self.vsrc, self.vtr, self.vtr2, self.vDma, self.vRd, self.vFl, self.vFlo, self.vOne,
         self.vF, self.vSt, self.vSt2) = (A.take() for _ in range(12))
        self.vB = A.take(16, 4)
        self.acc = [A.take(16, 4), A.take(16, 4)]
        self.vO = A.take(16, 4)


def in_addr(k, kind, sdst, sunit):
    if kind in ("s1", "s2", "s4"):
        k.e(f"s_lshl_b32 s{sdst}, s{sunit}, 15")
        k.e(f"s_add_u32 s{sdst}, s{sdst}, {(H1 if kind == 's4' else HIN):#x}")
    elif kind == "s3":
        k.e(f"s_lshl_b32 s{sdst}, s{sunit}, 18")
        k.e(f"s_lshl_b32 s{S_T7}, s{S_IDX2}, 16")
        k.e(f"s_add_u32 s{sdst}, s{sdst}, s{S_T7}")
        k.e(f"s_add_u32 s{sdst}, s{sdst}, {OB:#x}")
    elif kind == "s5":
        k.e(f"s_mul_i32 s{sdst}, s{sunit}, {112*1024}")
        k.e(f"s_mul_i32 s{S_T7}, s{S_IDX2}, {56*1024}")
        k.e(f"s_add_u32 s{sdst}, s{sdst}, s{S_T7}")
        k.e(f"s_add_u32 s{sdst}, s{sdst}, {MID:#x}")
    k.e(f"s_add_u32 s{sdst}, s{sdst}, s{S_L}")


def in_flag_addr(k, kind, sdst, sunit):
    if kind in ("s1", "s2", "s4"):
        k.e(f"s_lshl_b32 s{sdst}, s{sunit}, 6")
        k.e(f"s_add_u32 s{sdst}, s{sdst}, {(F_H1 if kind == 's4' else F_HIN):#x}")
    elif kind == "s3":
        k.e(f"s_lshl_b32 s{sdst}, s{sunit}, 9")
        k.e(f"s_lshl_b32 s{S_T7}, s{S_IDX2}, 7")
        k.e(f"s_add_u32 s{sdst}, s{sdst}, s{S_T7}")
        k.e(f"s_add_u32 s{sdst}, s{sdst}, {F_O:#x}")
    elif kind == "s5":
        k.e(f"s_lshl_b32 s{sdst}, s{sunit}, 8")
        k.e(f"s_mul_i32 s{S_T7}, s{S_IDX2}, 112")
        k.e(f"s_add_u32 s{sdst}, s{sdst}, s{S_T7}")
        k.e(f"s_add_u32 s{sdst}, s{sdst}, {F_MID:#x}")
    k.e(f"s_add_u32 s{sdst}, s{sdst}, s{S_F}")


PAYLOAD = {"s1": 32768, "s2": 32768, "s4": 32768, "s3": 65536, "s5": 57344}
SLOT = {"s1": 32768, "s2": 32768, "s4": 32768, "s3": 65536, "s5": 65536}


def issue_dma(k, R, kind, sunit, sslot):
    q = PAYLOAD[kind] // 4
    in_addr(k, kind, S_T0, sunit)
    k.e(f"s_mul_i32 s{S_T1}, s{S_W}, {q}")
    k.e(f"s_add_u32 s{S_T1}, s{S_T1}, s{sslot}")
    n = q // 1024
    for i in range(n):
        if i % 4 == 0:
            if i:
                k.e(f"s_add_u32 s{S_T0}, s{S_T0}, 4096")
                k.e(f"s_add_u32 s{S_T1}, s{S_T1}, 4096")
            k.e(f"s_mov_b32 m0, s{S_T1}")
            k.e("s_nop 0")
        k.e(f"buffer_load_dwordx4 v{R.vDma}, {sr(S_WS,4)}, s{S_T0} offen offset:{(i % 4) * 1024} sc1 lds")


def gemm_setup(k, R, kind):
    q = PAYLOAD[kind] // 4
    vT = f"v{R.vT}"
    k.lanefn(f"v{R.vDma}", lambda t: (t >> 6) * q + (t & 63) * 16, vT)
    k.lanefn(f"v{R.vRd}", lambda t: (t & 63) * 16, vT)
    if kind in ("s1", "s2", "s4"):
        k.lanefn(f"v{R.vFl}", lambda t: (t >> 6) * 16 + (t & 3) * 4, vT)
    elif kind == "s3":
        k.lanefn(f"v{R.vFl}", lambda t: (t >> 6) * 32 + (t & 7) * 4, vT)
    elif kind == "s5":
        k.e(f"v_and_b32 v{R.vFl}, 7, v0")
        k.e(f"v_min_u32 v{R.vFl}, 6, v{R.vFl}")
        k.e(f"v_lshlrev_b32 v{R.vFl}, 2, v{R.vFl}")
        k.lanefn(f"v{R.vF}", lambda t: (t >> 6) * 28, vT)
        k.e(f"v_add_u32 v{R.vFl}, v{R.vFl}, v{R.vF}")
    k.lanefn(f"v{R.vFlo}", lambda t: (t >> 6) * 4, vT)
    k.e(f"v_mov_b32 v{R.vOne}, 1")
    if kind in ("s3", "s5"):
        k.lanefn(f"v{R.vSt}", lambda t: ((t >> 3) & 3) * 16384 + (8 * (t >> 6) + ((t >> 5) & 1)) * 128 + (t & 7) * 16, vT)
    else:
        k.lanefn(f"v{R.vSt}", lambda t: (t >> 6) * 2048 + (t & 63) * 16, vT)


def gemm_weights(k, R, kind):
    vs, vt, vt2, vT = f"v{R.vsrc}", f"v{R.vtr}", f"v{R.vtr2}", f"v{R.vT}"
    if kind == "s1":
        k.srd(S_A, P_WK, 512 * 4096 * 2)
        k.srd(S_B, P_WV, 512 * 4096 * 2)
        k.w32_lane_tables(8192, False, vs, vt, vt2, vT)
        k.e(f"s_lshl_b32 s{S_U0}, s{S_IDX}, 8")
        k.load_w32(S_A, f"s{S_U0}", 8192, 0, 512, 0, False, vs, vt, vt2)
        k.load_w32(S_B, f"s{S_U0}", 8192, 0, 512, 128, False, vs, vt, vt2)
    elif kind == "s2":
        k.srd(S_A, P_WQ, 512 * 4096 * 2)
        k.w32_lane_tables(8192, False, vs, vt, vt2, vT)
        k.e(f"s_lshl_b32 s{S_U0}, s{S_IDX}, 8")
        k.load_w32(S_A, f"s{S_U0}", 8192, 0, 512, 0, False, vs, vt, vt2)
    elif kind == "s4":
        k.srd(S_A, P_WG, 512 * 1792 * 2)
        k.srd(S_B, P_WU, 512 * 1792 * 2)
        k.w32_lane_tables(3584, False, vs, vt, vt2, vT)
        k.e(f"s_lshl_b32 s{S_U0}, s{S_IDX}, 8")
        k.load_w32(S_A, f"s{S_U0}", 3584, 0, 512, 0, False, vs, vt, vt2)
        k.load_w32(S_B, f"s{S_U0}", 3584, 0, 512, 128, False, vs, vt, vt2)
    elif kind == "s3":
        k.srd(S_A, P_WO, 4096 * 512 * 2)
        k.w32_lane_tables(1024, True, vs, vt, vt2, vT)
        k.e(f"s_lshl_b32 s{S_U0}, s{S_IDX}, 8")
        k.e(f"s_lshl_b32 s{S_U1}, s{S_IDX2}, 20")
        k.e(f"s_add_u32 s{S_U0}, s{S_U0}, s{S_U1}")
        k.load_w32(S_A, f"s{S_U0}", 1024, 0, 512, 0, True, vs, vt, vt2)
        k.load_w32(S_A, f"s{S_U0}", 1024, 512, 512, 128, True, vs, vt, vt2)
    elif kind == "s5":
        k.srd(S_A, P_WD, 1792 * 512 * 2)
        k.w32_lane_tables(1024, True, vs, vt, vt2, vT)
        k.e(f"s_lshl_b32 s{S_U0}, s{S_IDX}, 8")
        k.e(f"s_mul_i32 s{S_U1}, s{S_IDX2}, {896*1024}")
        k.e(f"s_add_u32 s{S_U0}, s{S_U0}, s{S_U1}")
        k.load_w32(S_A, f"s{S_U0}", 1024, 0, 512, 0, True, vs, vt, vt2)
        k.load_w32(S_A, f"s{S_U0}", 1024, 512, 384, 128, True, vs, vt, vt2)
    k.e("s_barrier")


def gemm_mainloop(k, R, kind, hooks):
    nk = PAYLOAD[kind] // 1024
    two = kind in ("s1", "s4")
    DEPTH = 4

    def rd(t):
        k.e(f"ds_read_b128 {vr(R.vB + 4 * (t % DEPTH), 4)}, v{R.vRd} offset:{t * 1024}")
    for t in range(DEPTH - 1):
        rd(t)
    for t in range(nk):
        if t in hooks:
            hooks[t]()
        if t + DEPTH - 1 < nk:
            rd(t + DEPTH - 1)
        outstanding = min(nk - 1 - t, DEPTH - 1)
        k.e(f"s_waitcnt lgkmcnt({outstanding})")
        b = vr(R.vB + 4 * (t % DEPTH), 4)
        a0 = vr(R.acc[0], 16)
        k.e(f"v_mfma_f32_32x32x16_bf16 {a0}, {ar(4 * t, 4)}, {b}, {a0 if t else 0}")
        if two:
            a1 = vr(R.acc[1], 16)
            if kind == "s1":
                k.e(f"v_mfma_f32_32x32x16_bf16 {a1}, {b}, {ar(128 + 4 * t, 4)}, {a1 if t else 0}")
            else:
                k.e(f"v_mfma_f32_32x32x16_bf16 {a1}, {ar(128 + 4 * t, 4)}, {b}, {a1 if t else 0}")


def unit_head(k, R, kind):
    skip = k.uid("L_havepf")
    k.e(f"s_cmp_eq_u32 s{S_PREF}, 1")
    k.e(f"s_cbranch_scc1 {skip}")
    in_flag_addr(k, kind, S_T2, S_S)
    k.poll(f"v{R.vF}", f"v{R.vFl}", f"s{S_T2}")
    issue_dma(k, R, kind, S_S, S_SLOT)
    k.lab(skip)
    k.e("s_waitcnt vmcnt(0)")
    k.e("s_barrier")
    k.e(f"s_mov_b32 s{S_PREF}, 0")
    k.e(f"s_add_u32 s{S_NXT}, s{S_S}, s{S_STEP}")


def flag_fetch_next(k, R, kind):
    skip = k.uid("L_nofl")
    k.e(f"s_cmp_ge_u32 s{S_NXT}, s{S_END}")
    k.e(f"s_cbranch_scc1 {skip}")
    k.e(f"s_cmp_eq_u32 s{S_PREF}, 1")
    k.e(f"s_cbranch_scc1 {skip}")
    in_flag_addr(k, kind, S_T2, S_NXT)
    k.e(f"buffer_load_dword v{R.vF}, v{R.vFl}, {sr(S_WS,4)}, s{S_T2} offen sc1")
    k.lab(skip)


def try_prefetch(k, R, kind):
    skip = k.uid("L_nopf")
    k.e(f"s_cmp_ge_u32 s{S_NXT}, s{S_END}")
    k.e(f"s_cbranch_scc1 {skip}")
    k.e(f"s_cmp_eq_u32 s{S_PREF}, 1")
    k.e(f"s_cbranch_scc1 {skip}")
    k.e("s_waitcnt vmcnt(0)")
    k.e(f"v_cmp_eq_u32 vcc, 0, v{R.vF}")
    k.e(f"s_cbranch_vccnz {skip}")
    k.e(f"s_xor_b32 s{S_T3}, s{S_SLOT}, {SLOT[kind]:#x}")
    issue_dma(k, R, kind, S_NXT, S_T3)
    k.e(f"s_mov_b32 s{S_PREF}, 1")
    k.lab(skip)


def unit_tail(k, R, kind, loop):
    k.e(f"s_xor_b32 s{S_SLOT}, s{S_SLOT}, {SLOT[kind]:#x}")
    k.e(f"v_xor_b32 v{R.vRd}, {SLOT[kind]:#x}, v{R.vRd}")
    k.e(f"s_mov_b32 s{S_S}, s{S_NXT}")
    k.e(f"s_cmp_lt_u32 s{S_S}, s{S_END}")
    k.e(f"s_cbranch_scc1 {loop}")


def std_hooks(k, R, kind):
    nk = PAYLOAD[kind] // 1024
    a, b = nk // 3, (2 * nk) // 3

    def h0():
        flag_fetch_next(k, R, kind)

    def h1():
        try_prefetch(k, R, kind)
        flag_fetch_next(k, R, kind)

    def h2():
        try_prefetch(k, R, kind)
    return {1: h0, a: h1, b + 2: h2}


def pack16(k, dst, src):
    for i in range(8):
        k.e(f"v_cvt_pk_bf16_f32 v{dst+i}, v{src+2*i}, v{src+2*i+1}")


def role_gemm(k, kind):
    R = GemmRegs()
    k.c(f"---- role {kind}")
    gemm_setup(k, R, kind)
    gemm_weights(k, R, kind)
    k.e(f"s_mov_b32 s{S_PREF}, 0")
    k.e(f"s_mov_b32 s{S_SLOT}, 0")
    loop = k.uid(f"L_{kind}")
    k.lab(loop)
    unit_head(k, R, kind)
    gemm_mainloop(k, R, kind, std_hooks(k, R, kind))
    ws = sr(S_WS, 4)
    if kind == "s1":
        k.e(f"s_lshl_b32 s{S_U0}, s{S_S}, 18")
        k.e(f"s_lshl_b32 s{S_U1}, s{S_IDX}, 13")
        k.e(f"s_add_u32 s{S_U0}, s{S_U0}, s{S_U1}")
        k.e(f"s_add_u32 s{S_U0}, s{S_U0}, s{S_L}")
        k.e(f"s_add_u32 s{S_U1}, s{S_U0}, {VX:#x}")
        k.e(f"s_lshl_b32 s{S_U2}, s{S_S}, 9")
        k.e(f"s_lshl_b32 s{S_U3}, s{S_IDX}, 4")
        k.e(f"s_add_u32 s{S_U2}, s{S_U2}, s{S_U3}")
        k.e(f"s_add_u32 s{S_U2}, s{S_U2}, s{S_F}")
        k.nop(6)
        pack16(k, R.vO, R.acc[0])
        k.e(f"buffer_store_dwordx4 {vr(R.vO,4)}, v{R.vSt}, {ws}, s{S_U0} offen sc1")
        k.e(f"buffer_store_dwordx4 {vr(R.vO+4,4)}, v{R.vSt}, {ws}, s{S_U0} offen offset:1024 sc1")
        pack16(k, R.vO + 8, R.acc[1])
        k.e(f"buffer_store_dwordx4 {vr(R.vO+8,4)}, v{R.vSt}, {ws}, s{S_U1} offen sc1")
        k.e(f"buffer_store_dwordx4 {vr(R.vO+12,4)}, v{R.vSt}, {ws}, s{S_U1} offen offset:1024 sc1")
    elif kind == "s4":
        k.e(f"s_mul_i32 s{S_U0}, s{S_S}, {112*1024}")
        k.e(f"s_lshl_b32 s{S_U1}, s{S_IDX}, 13")
        k.e(f"s_add_u32 s{S_U0}, s{S_U0}, s{S_U1}")
        k.e(f"s_add_u32 s{S_U0}, s{S_U0}, s{S_L}")
        k.e(f"s_add_u32 s{S_U0}, s{S_U0}, {MID:#x}")
        k.e(f"s_lshl_b32 s{S_U2}, s{S_S}, 8")
        k.e(f"s_lshl_b32 s{S_U3}, s{S_IDX}, 4")
        k.e(f"s_add_u32 s{S_U2}, s{S_U2}, s{S_U3}")
        k.e(f"s_add_u32 s{S_U2}, s{S_U2}, s{S_F}")
        k.e(f"s_add_u32 s{S_U2}, s{S_U2}, {F_MID:#x}")
        k.nop(4)
        for i in range(16):
            k.e(f"v_max_f32 v{R.acc[0]+i}, 0, v{R.acc[0]+i}")
        for i in range(8):
            k.e(f"v_pk_mul_f32 {vr(R.acc[0]+2*i,2)}, {vr(R.acc[0]+2*i,2)}, {vr(R.acc[1]+2*i,2)}")
        pack16(k, R.vO, R.acc[0])
        k.e(f"buffer_store_dwordx4 {vr(R.vO,4)}, v{R.vSt}, {ws}, s{S_U0} offen sc1")
        k.e(f"buffer_store_dwordx4 {vr(R.vO+4,4)}, v{R.vSt}, {ws}, s{S_U0} offen offset:1024 sc1")
    else:
        is3 = kind == "s3"
        k.e(f"s_lshl_b32 s{S_U0}, s{S_S}, {18 if is3 else 17}")
        k.e(f"s_lshl_b32 s{S_U1}, s{S_IDX2}, 16")
        k.e(f"s_add_u32 s{S_U0}, s{S_U0}, s{S_U1}")
        k.e(f"s_lshl_b32 s{S_U1}, s{S_IDX}, 12")
        k.e(f"s_add_u32 s{S_U0}, s{S_U0}, s{S_U1}")
        k.e(f"s_add_u32 s{S_U0}, s{S_U0}, s{S_L}")
        k.e(f"s_add_u32 s{S_U0}, s{S_U0}, {(P3 if is3 else P5):#x}")
        k.e(f"s_lshl_b32 s{S_U2}, s{S_S}, {8 if is3 else 7}")
        k.e(f"s_lshl_b32 s{S_U3}, s{S_IDX}, {6 if is3 else 5}")
        k.e(f"s_add_u32 s{S_U2}, s{S_U2}, s{S_U3}")
        k.e(f"s_lshl_b32 s{S_U3}, s{S_IDX2}, 4")
        k.e(f"s_add_u32 s{S_U2}, s{S_U2}, s{S_U3}")
        k.e(f"s_add_u32 s{S_U2}, s{S_U2}, s{S_F}")
        k.e(f"s_add_u32 s{S_U2}, s{S_U2}, {(F_P3 if is3 else F_P5):#x}")
        k.nop(2)
        for q in range(4):
            k.e(f"buffer_store_dwordx4 {vr(R.acc[0]+4*q,4)}, v{R.vSt}, {ws}, s{S_U0} offen offset:{q*256} sc1")
    k.e("s_waitcnt vmcnt(0)")
    k.set_flag(f"v{R.vOne}", f"v{R.vFlo}", f"s{S_U2}")
    unit_tail(k, R, kind, loop)


def role_s2(k):
    kind = "s2"
    R = GemmRegs()
    A = R.A
    vQ = A.take(32, 4)
    vK = A.take(32, 4)
    vKM = A.take(32, 4)
    vV = A.take(8, 4)
    vVM = A.take(4, 4)
    vC = A.take(16, 4)
    vSM = A.take(16, 4)
    vP = A.take(12, 4)
    vM = A.take(4, 4)
    vQw, vKmo, vVmo, vF4, vNeg = (A.take() for _ in range(5))
    QX = 65536
    vT = f"v{R.vT}"
    k.c("---- role s2")
    gemm_setup(k, R, kind)
    k.lanefn(f"v{vQw}", lambda t: QX + (t >> 6) * 2048 + (t & 63) * 16, vT)
    k.lanefn(f"v{vKmo}", lambda t: ((t >> 5) & 1) * 128 + (t & 7) * 16, vT)
    k.lanefn(f"v{vVmo}", lambda t: ((32 * (t >> 6) + (t & 31)) * 2 + ((t >> 5) & 1)) * 8, vT)
    k.lanefn(f"v{vF4}", lambda t: (t & 3) * 4, vT)
    k.lanefn(f"v{R.vF}", lambda t: (t & 31) - 4 * ((t >> 5) & 1) + 64, vT)
    k.e(f"v_mov_b32 v{vNeg}, {f32bits(-1e30):#x}")
    for r in range(16):
        kk = 8 * (r >> 2) + (r & 3) + 64
        k.e(f"v_mov_b32 {vT}, {kk}")
        k.e(f"v_cmp_gt_u32 vcc, {vT}, v{R.vF}")
        k.nop(2)
        k.e(f"v_cndmask_b32 v{vC+r}, 0, v{vNeg}, vcc")
    k.e(f"v_mov_b32 v{vVM+2}, 0")
    k.e(f"v_mov_b32 v{vVM+3}, 0")
    k.e(f"v_mov_b32 v{vP+10}, 0")
    k.e(f"v_mov_b32 v{vP+11}, 0")
    k.e(f"s_mov_b32 s{S_U5}, {f32bits(LOG2E_SCALE):#x}")
    gemm_weights(k, R, kind)
    k.e(f"s_mov_b32 s{S_PREF}, 0")
    k.e(f"s_mov_b32 s{S_SLOT}, 0")
    ws = sr(S_WS, 4)
    loop = k.uid("L_s2")
    k.lab(loop)
    unit_head(k, R, kind)
    gemm_mainloop(k, R, kind, std_hooks(k, R, kind))
    k.e(f"s_lshl_b32 s{S_U0}, s{S_S}, 5")
    k.e(f"s_add_u32 s{S_U0}, s{S_U0}, s{S_IDX}")
    k.e(f"s_lshl_b32 s{S_U1}, s{S_U0}, 13")
    k.e(f"s_add_u32 s{S_U1}, s{S_U1}, s{S_L}")
    k.e(f"s_lshl_b32 s{S_U2}, s{S_U0}, 4")
    k.e(f"s_add_u32 s{S_U2}, s{S_U2}, s{S_F}")
    k.e(f"s_lshl_b32 s{S_U3}, s{S_U0}, 11")
    k.e(f"s_add_u32 s{S_U3}, s{S_U3}, s{S_L}")
    k.nop(6)
    pack16(k, R.vO, R.acc[0])
    k.e(f"ds_write_b128 v{vQw}, {vr(R.vO,4)}")
    k.e(f"ds_write_b128 v{vQw}, {vr(R.vO+4,4)} offset:1024")
    k.e(f"s_add_u32 s{S_T2}, s{S_U2}, {F_KV:#x}")
    k.poll(f"v{vM}", f"v{vF4}", f"s{S_T2}")
    k.e(f"v_and_b32 v{vM+1}, 0x3ff, v{R.vRd}")
    k.e(f"s_add_u32 s{S_T1}, s{S_U1}, 4096")
    for t in range(8):
        k.e(f"buffer_load_dwordx4 {vr(vK+4*t,4)}, v{vM+1}, {ws}, s{S_U1 if t < 4 else S_T1} offen offset:{(t%4)*1024} sc1")
    k.e(f"s_add_u32 s{S_T1}, s{S_U1}, {VX:#x}")
    for u in range(2):
        k.e(f"buffer_load_dwordx4 {vr(vV+4*u,4)}, v{R.vSt}, {ws}, s{S_T1} offen offset:{u*1024} sc1")
    k.e("s_waitcnt lgkmcnt(0)")
    k.e("s_barrier")
    k.e(f"v_add_u32 v{vM+1}, {QX}, v{vM+1}")
    for t in range(8):
        k.e(f"ds_read_b128 {vr(vQ+4*t,4)}, v{vM+1} offset:{t*1024}")
    k.e("s_waitcnt vmcnt(0) lgkmcnt(0)")
    S = R.acc[1]
    for t in range(8):
        k.e(f"v_mfma_f32_32x32x16_bf16 {vr(S,16)}, {vr(vK+4*t,4)}, {vr(vQ+4*t,4)}, {vr(S,16) if t else vr(vC,16)}")
    k.e(f"s_add_u32 s{S_T2}, s{S_U2}, {F_KM:#x}")
    k.poll(f"v{vM}", f"v{vF4}", f"s{S_T2}")
    k.e(f"s_add_u32 s{S_T1}, s{S_U3}, {KM:#x}")
    for t in range(8):
        k.e(f"buffer_load_dwordx4 {vr(vKM+4*t,4)}, v{vKmo}, {ws}, s{S_T1} offen offset:{t*256} sc1")
    k.e(f"s_add_u32 s{S_T1}, s{S_U3}, {VM:#x}")
    k.e(f"buffer_load_dwordx2 {vr(vVM,2)}, v{vVmo}, {ws}, s{S_T1} offen sc1")
    for t in range(8):
        k.e(f"s_waitcnt vmcnt({8 - t})")
        k.e(f"v_mfma_f32_32x32x16_bf16 {vr(vSM,16)}, {vr(vKM+4*t,4)}, {vr(vQ+4*t,4)}, {vr(vSM,16) if t else 0}")
    k.nop(16)
    vals = [S + i for i in range(16)] + [vSM + i for i in range(4)]
    m = vM
    k.e(f"v_max3_f32 v{m}, v{vals[0]}, v{vals[1]}, v{vals[2]}")
    for i in range(3, 19, 2):
        k.e(f"v_max3_f32 v{m}, v{m}, v{vals[i]}, v{vals[i+1]}")
    k.e(f"v_max_f32 v{m}, v{m}, v{vals[19]}")
    k.e(f"v_mov_b32 v{m+1}, v{m}")
    k.nop(2)
    k.e(f"v_permlane32_swap_b32 v{m}, v{m+1}")
    k.nop(2)
    k.e(f"v_max_f32 v{m}, v{m}, v{m+1}")
    k.e(f"v_mul_f32 v{m}, s{S_U5}, v{m}")
    for v in vals:
        k.e(f"v_fma_f32 v{v}, v{v}, s{S_U5}, -v{m}")
    for v in vals:
        k.e(f"v_exp_f32 v{v}, v{v}")
    k.nop(1)
    k.e(f"v_add_f32 v{m}, v{vals[0]}, v{vals[1]}")
    k.e(f"v_add_f32 v{m+2}, v{vals[2]}, v{vals[3]}")
    for i in range(4, 20, 2):
        k.e(f"v_add_f32 v{m}, v{m}, v{vals[i]}")
        k.e(f"v_add_f32 v{m+2}, v{m+2}, v{vals[i+1]}")
    k.e(f"v_add_f32 v{m}, v{m}, v{m+2}")
    k.e(f"v_mov_b32 v{m+1}, v{m}")
    k.nop(2)
    k.e(f"v_permlane32_swap_b32 v{m}, v{m+1}")
    k.nop(2)
    k.e(f"v_add_f32 v{m}, v{m}, v{m+1}")
    k.e(f"v_rcp_f32 v{m}, v{m}")
    k.nop(1)
    for v in vals:
        k.e(f"v_mul_f32 v{v}, v{v}, v{m}")
    for i in range(10):
        k.e(f"v_cvt_pk_bf16_f32 v{vP+i}, v{vals[2*i]}, v{vals[2*i+1]}")
    k.e("s_waitcnt vmcnt(0)")
    k.nop(2)
    O = R.acc[0]
    k.e(f"v_mfma_f32_32x32x16_bf16 {vr(O,16)}, {vr(vV,4)}, {vr(vP,4)}, 0")
    k.e(f"v_mfma_f32_32x32x16_bf16 {vr(O,16)}, {vr(vV+4,4)}, {vr(vP+4,4)}, {vr(O,16)}")
    k.e(f"v_mfma_f32_32x32x16_bf16 {vr(O,16)}, {vr(vVM,4)}, {vr(vP+8,4)}, {vr(O,16)}")
    k.e(f"s_add_u32 s{S_T1}, s{S_U1}, {OB:#x}")
    k.e(f"s_add_u32 s{S_T2}, s{S_U2}, {F_O:#x}")
    k.nop(16)
    pack16(k, R.vO, O)
    k.e(f"buffer_store_dwordx4 {vr(R.vO,4)}, v{R.vSt}, {ws}, s{S_T1} offen sc1")
    k.e(f"buffer_store_dwordx4 {vr(R.vO+4,4)}, v{R.vSt}, {ws}, s{S_T1} offen offset:1024 sc1")
    k.e("s_waitcnt vmcnt(0)")
    k.set_flag(f"v{R.vOne}", f"v{R.vFlo}", f"s{S_T2}")
    unit_tail(k, R, kind, loop)


WVH, WOH, KXB, MEMB, QKB, OXB = 0, 65536, 131072, 147456, 155648, 159744
CHAIN_LDS = 161792


def role_chain(k, wait_kv=True):
    ws = sr(S_WS, 4)
    A = Alloc(1, 44)
    (vT, vIdx, vMemG, vMemW, vL16, vWv, vKxR, vVx, vQKw, vQKr, vOXw, vPst, vRd, vMst, vKmo, vVmo, vFl, vFlo,
     vOne) = (A.take() for _ in range(19))
    vCm = A.take(4, 4)
    vNeg = A.take(4, 4)
    vVX = A.take(16, 4)
    assert A.n <= 44
    vM, vQK, vAV, vSt, vX4 = 44, 76, 92, 100, 124
    WV0, WO0 = 128, 192
    vS, vP, vZ = 100, 112, 118
    vFv = 126
    vOA = 92
    T = f"v{vT}"
    hs = ""
    k.c("---- role chain")
    k.lanefn(f"v{vIdx}", lambda t: 0x44444444 ^ (0xAAAAAAAA if t & 8 else 0), T)
    k.lanefn(f"v{vMemG}", lambda t: (t >> 6) * 2048 + (t & 63) * 16, T)
    k.e(f"v_add_u32 v{vMemW}, {MEMB}, v{vMemG}")
    k.lanefn(f"v{vL16}", lambda t: MEMB + (t & 63) * 16, T)
    k.lanefn(f"v{vWv}", lambda t: (t >> 6) * 16384 + (t & 63) * 16, T)
    k.lanefn(f"v{vKxR}", lambda t: KXB + (((t >> 4) & 3) * 32 + 16 * ((t >> 3) & 1) + (t & 7)) * 16, T)
    k.lanefn(f"v{vVx}", lambda t: (2 * (t >> 6) + ((t >> 5) & 1)) * 1024 + ((t >> 4) & 1) * 512 + (t & 15) * 16, T)
    k.lanefn(f"v{vQKw}", lambda t: QKB + (32 * (t >> 6) + 16 * ((t >> 5) & 1) + (t & 15)) * 32 + 8 * ((t >> 4) & 1), T)
    k.lanefn(f"v{vQKr}", lambda t: QKB + (16 * ((t >> 5) & 1) + 4 * ((t >> 4) & 1) + ((t >> 2) & 3)) * 32 + (t & 3) * 8, T)

    def f_oxw(t):
        w, g, tok = t >> 6, (t >> 4) & 3, t & 7
        return OXB + (w >> 1) * 1024 + ((2 * (w & 1) + (g >> 1)) * 16 + (g & 1) * 8 + tok) * 16
    k.lanefn(f"v{vOXw}", f_oxw, T)
    k.lanefn(f"v{vPst}", lambda t: (8 * (t >> 6) + ((t >> 5) & 1)) * 16384 + ((t >> 4) & 1) * 256 + (t & 15) * 16, T)
    k.lanefn(f"v{vRd}", lambda t: ((t >> 3) & 7) * 2048 + (t >> 6) * 128 + (t & 7) * 16, T)
    k.lanefn(f"v{vMst}", lambda t: ((t >> 6) & 1) * 128 + (t >> 7) * 64 + ((t >> 5) & 1) * 16 + ((t >> 4) & 1) * 32 + (t & 7) * 2, T)
    k.lanefn(f"v{vKmo}", lambda t: (t >> 6) * 512 + ((t >> 4) & 3) * 128 + (t & 7) * 16, T)
    k.lanefn(f"v{vVmo}", lambda t: ((32 * (t >> 6) + 16 * ((t >> 5) & 1) + (t & 15)) * 2 + ((t >> 4) & 1)) * 8, T)
    k.lanefn(f"v{vFl}", lambda t: (t & 3) * 4, T)
    k.lanefn(f"v{vFlo}", lambda t: (t >> 6) * 4, T)
    k.e(f"v_mov_b32 v{vOne}, 1")
    neg = f32bits(-1e30)
    k.lanefn(f"v{vCm}", lambda t: (0 if t & 32 else neg), T)
    for i in range(1, 4):
        k.e(f"v_mov_b32 v{vCm+i}, v{vCm}")
    for i in range(4):
        k.e(f"v_mov_b32 v{vNeg+i}, -1")
    k.e(f"s_mov_b32 s{S_U5}, {f32bits(LOG2E_SCALE):#x}")
    k.e(f"s_mov_b32 s{S_MLO}, 0x00ff00ff")
    k.e(f"s_mov_b32 s{S_MLO+1}, 0x00ff00ff")
    k.e(f"s_mov_b32 s{S_MHI}, 0xff00ff00")
    k.e(f"s_mov_b32 s{S_MHI+1}, 0xff00ff00")

    k.srd(S_A, P_WQ, 512 * 4096 * 2)
    k.srd(S_B, P_WK, 512 * 4096 * 2)
    k.srd(S_C, P_WV, 512 * 4096 * 2)
    k.srd(S_D, P_WO, 4096 * 512 * 2)
    vs = [112, 113, 114, 115]
    vt = [116, 117, 118, 119]
    for i in range(4):
        k.lanefn(f"v{vs[i]}", lambda t, i=i: ((t & 15) ^ (2 * ((t >> 4) & 1)) ^ (4 * i)) * 16, T, nbits=6)
    k.lanefn(f"v{vt[0]}", lambda t: ((t >> 4) & 3) * 8192, T, nbits=6)
    for i in range(4):
        k.e(f"v_add_u32 v{vs[i]}, v{vs[i]}, v{vt[0]}")

    def f_tr(t):
        w, l = t >> 6, t & 63
        g, r, c = l >> 4, (l >> 2) & 3, l & 3
        row = 16 * (g >> 1) + 4 * (g & 1) + 8 * (r >> 1) + (r & 1)
        swz = (row & 1) | (((row >> 2) & 3) << 1)
        piece = 4 * w + (c >> 1)
        return row * 256 + ((piece ^ (2 * swz)) * 16) + (c & 1) * 8
    k.lanefn(f"v{vt[0]}", f_tr, T)
    k.e(f"v_add_u32 v{vt[1]}, 0x10000, v{vt[0]}")
    k.e(f"v_xor_b32 v{vt[2]}, 32, v{vt[0]}")
    k.e(f"v_xor_b32 v{vt[3]}, 32, v{vt[1]}")

    def stage_qkv(srd):
        k.e("s_barrier")
        k.e(f"s_lshl_b32 s{S_T0}, s{S_W}, 20")
        k.e(f"s_lshl_b32 s{S_T1}, s{S_IDX}, 8")
        k.e(f"s_add_u32 s{S_T0}, s{S_T0}, s{S_T1}")
        k.e(f"s_lshl_b32 s{S_T1}, s{S_W}, 15")
        k.e(f"s_mov_b32 s{S_T2}, 0")
        l = k.uid("L_cw")
        k.lab(l)
        for i in range(4):
            k.e(f"s_mov_b32 m0, s{S_T1}")
            k.e(f"s_add_u32 s{S_T1}, s{S_T1}, 1024")
            k.e(f"buffer_load_dwordx4 v{vs[i]}, {sr(srd,4)}, s{S_T0} offen lds")
            k.e(f"s_add_u32 s{S_T0}, s{S_T0}, 32768")
        k.e(f"s_add_u32 s{S_T2}, s{S_T2}, 1")
        k.e(f"s_cmp_lt_u32 s{S_T2}, 8")
        k.e(f"s_cbranch_scc1 {l}")
        k.e("s_waitcnt vmcnt(0)")
        k.e("s_barrier")

    def read_qkv(dst):
        for Tl in range(2):
            for t in range(8):
                for jq in range(4):
                    off = (t & 3) * 16384 + (jq >> 1) * 8192 + (jq & 1) * 512
                    k.e(f"ds_read_b64_tr_b16 {dst(Tl, t, 2 * jq)}, v{vt[2 * Tl + (t >> 2)]} offset:{off}")
                if t & 1:
                    k.e("s_waitcnt lgkmcnt(0)")
    stage_qkv(S_A)
    read_qkv(lambda Tl, t, o: ar(64 * Tl + 8 * t + o, 2))
    stage_qkv(S_B)
    read_qkv(lambda Tl, t, o: ar(128 + 64 * Tl + 8 * t + o, 2))
    stage_qkv(S_C)
    read_qkv(lambda Tl, t, o: vr((WV0 if Tl == 0 else 44) + 8 * t + o, 2))
    k.e("s_barrier")
    for t in range(8):
        for hf in range(2):
            k.e(f"ds_write_b128 v{vWv}, {vr(44 + 8 * t + 4 * hf, 4)} offset:{WVH + t * 2048 + hf * 1024}")
    k.e("s_waitcnt lgkmcnt(0)")
    k.lanefn(f"v{vs[0]}", lambda t: (t & 63) * 16, T, nbits=6)

    def f_tro(t):
        w, l = t >> 6, t & 63
        g, r, c = l >> 4, (l >> 2) & 3, l & 3
        row = 16 * (g & 1) + 8 * (g >> 1) + 4 * (r >> 1) + (r & 1)
        swz = (row & 1) | (((row >> 2) & 1) << 1) | (((row >> 4) & 1) << 2)
        piece = 16 * w + (c >> 1)
        return 65536 + row * 1024 + ((piece ^ (2 * swz)) * 16) + (c & 1) * 8
    k.lanefn(f"v{vt[0]}", f_tro, T)
    for tp in range(2):
        k.e("s_barrier")
        k.e(f"s_lshl_b32 s{S_T0}, s{S_IDX}, 17")
        k.e(f"s_lshl_b32 s{S_T1}, s{S_W}, 14")
        k.e(f"s_add_u32 s{S_T0}, s{S_T0}, s{S_T1}")
        k.e(f"s_add_u32 s{S_T0}, s{S_T0}, {tp * 65536}")
        k.e(f"s_add_u32 s{S_T1}, s{S_T1}, 65536")
        k.e(f"s_and_b32 s{S_T3}, s{S_W}, 1")
        k.e(f"s_lshl_b32 s{S_T3}, s{S_T3}, 7")
        for i in range(16):
            x = ((i & 1) | (((i >> 2) & 1) << 1)) * 32
            k.e(f"s_or_b32 s{S_T2}, s{S_T3}, {x}")
            k.e(f"v_xor_b32 v{vs[1 + (i & 1)]}, s{S_T2}, v{vs[0]}")
            k.e(f"s_mov_b32 m0, s{S_T1}")
            k.e(f"s_add_u32 s{S_T1}, s{S_T1}, 1024")
            k.e(f"buffer_load_dwordx4 v{vs[1 + (i & 1)]}, {sr(S_D,4)}, s{S_T0} offen lds")
            k.e(f"s_add_u32 s{S_T0}, s{S_T0}, 1024")
        k.e("s_waitcnt vmcnt(0)")
        k.e("s_barrier")
        for tile in range(8):
            k.e(f"v_xor_b32 v{vt[1]}, {tile * 32}, v{vt[0]}")
            for jq in range(4):
                off = ((jq >> 1) * 32 + (jq & 1) * 2) * 1024
                if tile < 4:
                    d = WO0 + 16 * tile + 8 * tp + 2 * jq
                else:
                    d = 44 + 16 * (tile - 4) + 8 * tp + 2 * jq
                k.e(f"ds_read_b64_tr_b16 {vr(d,2)}, v{vt[1]} offset:{off}")
            k.e("s_waitcnt lgkmcnt(0)")
    k.e("s_barrier")
    k.e(f"v_add_u32 v{vt[1]}, {WOH}, v{vWv}")
    for i in range(8):
        for hf in range(2):
            k.e(f"ds_write_b128 v{vt[1]}, {vr(44 + 8 * i + 4 * hf, 4)} offset:{i * 2048 + hf * 1024}")
    k.e("s_waitcnt lgkmcnt(0)")

    def sh_addr(sdst, sunit, sh, base_sgpr):
        k.e(f"s_lshl_b32 s{sdst}, s{sunit}, 5")
        k.e(f"s_add_u32 s{sdst}, s{sdst}, s{S_IDX}")
        k.e(f"s_lshl_b32 s{sdst}, s{sdst}, {sh}")
        k.e(f"s_add_u32 s{sdst}, s{sdst}, s{base_sgpr}")

    def prefetch_kv(sunit, vdst):
        sh_addr(S_T0, sunit, 13, S_L)
        k.e(f"s_and_b32 s{S_T1}, s{sunit}, 1")
        k.e(f"s_lshl_b32 s{S_T1}, s{S_T1}, 13")
        k.e(f"s_lshl_b32 s{S_T2}, s{S_W}, 11")
        k.e(f"s_add_u32 s{S_T1}, s{S_T1}, s{S_T2}")
        k.e(f"s_add_u32 m0, s{S_T1}, {KXB}")
        k.e(f"s_add_u32 s{S_T1}, s{S_T0}, {VX:#x}")
        k.e(f"buffer_load_dwordx4 v{vMemG}, {ws}, s{S_T0} offen sc1 lds")
        k.e(f"buffer_load_dwordx4 v{vMemG}, {ws}, s{S_T0} offen offset:1024 sc1 lds")
        k.e(f"buffer_load_dwordx4 {vr(vdst,4)}, v{vVx}, {ws}, s{S_T1} offen sc1")
        k.e(f"buffer_load_dwordx4 {vr(vdst+4,4)}, v{vVx}, {ws}, s{S_T1} offen offset:256 sc1")

    def kv_flag_addr(sdst, sunit):
        sh_addr(sdst, sunit, 4, S_F)

    def zero(base, n):
        for i in range(n):
            k.e(f"v_mov_b32 v{base+i}, 0")

    def smf(acc, a, b):
        k.e(f"v_smfmac_f32_16x16x64_bf16 {vr(acc,4)}, {a}, {b}, v{vIdx}")

    def swapadd(x, y):
        for i in range(4):
            k.e(f"v_permlane32_swap_b32 v{x+i}, v{y+i}")
        k.nop(1)
        for i in range(4):
            k.e(f"v_add_f32 v{x+i}, v{x+i}, v{y+i}")

    k.e(f"s_mov_b32 s{S_S}, 0")
    kv_flag_addr(S_T3, S_S)
    k.poll(f"v{vFv}", f"v{vFl}", f"s{S_T3}")
    prefetch_kv(S_S, vVX)
    k.srd(S_A, P_MEM0, 8 * 512 * 2)

    def f_m0(t):
        w, l = t >> 6, t & 63
        return (l & 7) * 1024 + (16 * w + 2 * (l >> 4) + ((l >> 3) & 1)) * 16
    k.lanefn(f"v{vFv}", f_m0, T)
    k.e(f"buffer_load_dwordx4 {vr(vQK,4)}, v{vFv}, {sr(S_A,4)}, 0 offen")
    k.e(f"buffer_load_dwordx4 {vr(vQK+4,4)}, v{vFv}, {sr(S_A,4)}, 0 offen offset:128")
    k.e(f"s_mov_b32 s{S_T3}, 1")
    kv_flag_addr(S_U4, S_T3)
    k.e("s_waitcnt vmcnt(0)")
    k.e(f"buffer_load_dword v{vFv}, v{vFl}, {ws}, s{S_U4} offen sc1")
    k.e("s_waitcnt vmcnt(0)")
    k.e("s_barrier")
    L_have = k.uid("L_ch_have")
    k.e(f"s_branch {L_have}")

    def body(par):
        vVc = vVX + 8 * par
        vVn = vVX + 8 * (1 - par)
        lp = k.uid("L_ch_pm")
        k.e(f"s_lshl_b32 s{S_U0}, s{S_S}, 13")
        k.e(f"s_add_u32 s{S_U0}, s{S_U0}, s{S_PO}")
        k.lab(lp)
        k.e(f"buffer_load_dwordx4 {vr(vQK,4)}, v{vMemG}, {ws}, s{S_U0} offen sc1")
        k.e(f"buffer_load_dwordx4 {vr(vQK+4,4)}, v{vMemG}, {ws}, s{S_U0} offen offset:1024 sc1")
        k.tick()
        k.e("s_waitcnt vmcnt(0)")
        k.e(f"v_max3_u32 {T}, v{vQK}, v{vQK+1}, v{vQK+2}")
        k.e(f"v_max3_u32 {T}, {T}, v{vQK+3}, v{vQK+4}")
        k.e(f"v_max3_u32 {T}, {T}, v{vQK+5}, v{vQK+6}")
        k.e(f"v_max_u32 {T}, {T}, v{vQK+7}")
        k.e(f"v_cmp_eq_u32 vcc, -1, {T}")
        k.e(f"s_cbranch_vccnz {lp}")
        if par == 0:
            k.lab(L_have)
        k.e(f"ds_write_b128 v{vMemW}, {vr(vQK,4)}")
        k.e(f"ds_write_b128 v{vMemW}, {vr(vQK+4,4)} offset:1024")
        k.e(f"s_add_u32 s{S_NXT}, s{S_S}, 1")
        nopf = k.uid("L_ch_nopf")
        k.e(f"s_cmp_ge_u32 s{S_NXT}, 64")
        k.e(f"s_cbranch_scc1 {nopf}")
        okf = k.uid("L_ch_okf")
        k.e(f"v_cmp_eq_u32 vcc, 0, v{vFv}")
        k.e(f"s_cbranch_vccz {okf}")
        kv_flag_addr(S_T3, S_NXT)
        k.poll(f"v{vFv}", f"v{vFl}", f"s{S_T3}")
        k.lab(okf)
        prefetch_kv(S_NXT, vVn)
        k.e(f"s_add_u32 s{S_T3}, s{S_S}, 2")
        k.e(f"s_min_u32 s{S_T3}, s{S_T3}, 63")
        kv_flag_addr(S_U4, S_T3)
        k.e(f"buffer_load_dword v{vFv}, v{vFl}, {ws}, s{S_U4} offen sc1")
        k.lab(nopf)
        k.e("s_waitcnt lgkmcnt(0)")
        k.e("s_barrier")
        for t in range(8):
            k.e(f"ds_read_b128 {vr(vM+4*t,4)}, v{vL16} offset:{t*1024}")
        for i in range(3):
            for hf in range(2):
                k.e(f"ds_read_b128 {vr(vSt+8*i+4*hf,4)}, v{vWv} offset:{WVH + i*2048 + hf*1024}")
        zero(vQK, 16)
        zero(vAV, 8)
        for t in range(8):
            k.e(f"s_waitcnt lgkmcnt({7 - t + 6})")
            smf(vQK, vr(vM+4*t,4), ar(8*t, 8))
            smf(vQK+4, vr(vM+4*t,4), ar(64+8*t, 8))
        for t in range(8):
            smf(vQK+8, vr(vM+4*t,4), ar(128+8*t, 8))
            smf(vQK+12, vr(vM+4*t,4), ar(192+8*t, 8))
            if t == 4:
                swapadd(vQK, vQK+4)
                k.e(f"v_cvt_pk_bf16_f32 v{vQK}, v{vQK}, v{vQK+1}")
                k.e(f"v_cvt_pk_bf16_f32 v{vQK+1}, v{vQK+2}, v{vQK+3}")
                k.e(f"ds_write_b64 v{vQKw}, {vr(vQK,2)}")

        def vstep(t):
            smf(vAV, vr(vM+4*t,4), vr(WV0+8*t, 8))
            smf(vAV+4, vr(vM+4*t,4), vr(vSt+8*(t % 3), 8))
            if t + 3 < 8:
                for hf in range(2):
                    k.e(f"ds_read_b128 {vr(vSt+8*(t%3)+4*hf,4)}, v{vWv} offset:{WVH + (t+3)*2048 + hf*1024}")
            k.e(f"ds_read_b128 {vr(vM+4*t,4)}, v{vKxR} offset:{(t >> 1)*2048 + (t & 1)*128}")
        k.e("s_waitcnt lgkmcnt(0)")
        vstep(0)
        vstep(1)
        k.nop(4)
        swapadd(vQK+8, vQK+12)
        k.e(f"v_cvt_pk_bf16_f32 v{vQK+8}, v{vQK+8}, v{vQK+9}")
        k.e(f"v_cvt_pk_bf16_f32 v{vQK+9}, v{vQK+10}, v{vQK+11}")
        k.e(f"ds_write_b64 v{vQKw}, {vr(vQK+8,2)} offset:16")
        vstep(2)
        k.e("s_waitcnt lgkmcnt(3)")
        vstep(3)
        k.e("s_barrier")
        for t in range(4):
            for hf in range(2):
                k.e(f"ds_read_b64_tr_b16 {vr(vQK+4*t+2*hf,2)}, v{vQKr} offset:{t*1024 + hf*256}")
        k.e("s_waitcnt lgkmcnt(11)")
        vstep(4)
        k.e("s_waitcnt lgkmcnt(13)")
        vstep(5)
        k.e("s_waitcnt lgkmcnt(11)")
        vstep(6)
        k.e("s_waitcnt lgkmcnt(3)")
        vstep(7)
        k.e("s_waitcnt lgkmcnt(0)")
        for t in range(4):
            x = vr(vQK+4*t, 4)
            k.e(f"v_mfma_f32_16x16x32_bf16 {vr(vS+8,4)}, {x}, {x}, {vr(vS+8,4) if t else vr(vCm,4)}")
            k.e(f"v_mfma_f32_16x16x32_bf16 {vr(vS,4)}, {vr(vM+8*t,4)}, {x}, {vr(vS,4) if t else 0}")
            k.e(f"v_mfma_f32_16x16x32_bf16 {vr(vS+4,4)}, {vr(vM+8*t+4,4)}, {x}, {vr(vS+4,4) if t else 0}")
        swapadd(vAV, vAV+4)
        k.e(f"v_cvt_pk_bf16_f32 v{vZ}, v{vAV}, v{vAV+1}")
        k.e(f"v_cvt_pk_bf16_f32 v{vZ+1}, v{vAV+2}, v{vAV+3}")
        sh_addr(S_U1, S_S, 11, S_L)
        k.e(f"s_add_u32 s{S_T0}, s{S_U1}, {VM:#x}")
        k.e(f"buffer_store_dwordx2 {vr(vZ,2)}, v{vVmo}, {ws}, s{S_T0} offen sc1")
        k.e(f"s_add_u32 s{S_T0}, s{S_U1}, {KM:#x}")
        k.e(f"s_mov_b64 exec, {sr(S_MHI,2)}")
        done = k.uid("L_ch_km")
        for w in range(4):
            nx = k.uid("L_ch_kmn")
            if w < 3:
                k.e(f"s_cmp_lg_u32 s{S_W}, {w}")
                k.e(f"s_cbranch_scc1 {nx}")
            k.e(f"buffer_store_dwordx4 {vr(vQK+4*w,4)}, v{vKmo}, {ws}, s{S_T0} offen sc1")
            if w < 3:
                k.e(f"s_branch {done}")
                k.lab(nx)
        k.lab(done)
        k.e("s_mov_b64 exec, -1")
        k.e(f"v_mov_b32 v{vZ+2}, v{vZ}")
        k.e(f"v_mov_b32 v{vZ+3}, v{vZ+1}")
        k.e(f"v_add_u32 {T}, {WOH}, v{vWv}")
        k.e(f"v_permlane32_swap_b32 v{vZ+2}, v{vZ}")
        k.e(f"v_permlane32_swap_b32 v{vZ+3}, v{vZ+1}")
        for i in range(4):
            for hf in range(2):
                k.e(f"ds_read_b128 {vr(vM+8*i+4*hf,4)}, {T} offset:{i*2048 + hf*1024}")
        m = vX4
        k.e(f"v_max3_f32 v{m}, v{vS+8}, v{vS+9}, v{vS+10}")
        k.e(f"v_max3_f32 v{m+1}, v{vS+11}, v{vS}, v{vS+1}")
        k.e(f"v_max3_f32 v{m}, v{m}, v{vS+2}, v{vS+3}")
        k.e(f"v_max3_f32 v{m+1}, v{m+1}, v{vS+4}, v{vS+5}")
        k.e(f"v_max3_f32 v{m}, v{m}, v{vS+6}, v{vS+7}")
        k.e(f"v_max_f32 v{m}, v{m}, v{m+1}")
        for sw in ("v_permlane16_swap_b32", "v_permlane32_swap_b32"):
            k.e(f"v_mov_b32 v{m+1}, v{m}")
            k.nop(2)
            k.e(f"{sw} v{m}, v{m+1}")
            k.nop(1)
            k.e(f"v_max_f32 v{m}, v{m}, v{m+1}")
        k.e(f"v_mul_f32 v{m}, s{S_U5}, v{m}")
        for i in range(12):
            k.e(f"v_fma_f32 v{vS+i}, v{vS+i}, s{S_U5}, -v{m}")
        for i in range(12):
            k.e(f"v_exp_f32 v{vS+i}, v{vS+i}")
        k.nop(1)
        for i in range(6):
            k.e(f"v_cvt_pk_bf16_f32 v{vP+i}, v{vS+2*i}, v{vS+2*i+1}")
        k.nop(1)
        k.e(f"v_mfma_f32_16x16x32_bf16 {vr(vQK,4)}, {vr(vVc,4)}, {vr(vP,4)}, 0")
        k.e(f"v_mfma_f32_16x16x32_bf16 {vr(vQK+4,4)}, {vr(vVc+4,4)}, {vr(vP,4)}, 0")
        k.e(f"v_mfma_f32_16x16x16_bf16 {vr(vQK+8,4)}, {vr(vZ+2,2)}, {vr(vP+4,2)}, 0")
        k.e(f"v_mfma_f32_16x16x16_bf16 {vr(vQK+12,4)}, {vr(vZ,2)}, {vr(vP+4,2)}, 0")
        for i in range(3):
            k.e(f"v_pk_add_f32 {vr(vS+4*i,2)}, {vr(vS+4*i,2)}, {vr(vS+4*i+2,2)}")
        k.e(f"v_pk_add_f32 {vr(vS,2)}, {vr(vS,2)}, {vr(vS+4,2)}")
        k.e(f"v_pk_add_f32 {vr(vS,2)}, {vr(vS,2)}, {vr(vS+8,2)}")
        k.e(f"v_add_f32 v{m}, v{vS}, v{vS+1}")
        for sw in ("v_permlane16_swap_b32", "v_permlane32_swap_b32"):
            k.e(f"v_mov_b32 v{m+1}, v{m}")
            k.nop(2)
            k.e(f"{sw} v{m}, v{m+1}")
            k.nop(1)
            k.e(f"v_add_f32 v{m}, v{m}, v{m+1}")
        k.e(f"v_rcp_f32 v{m}, v{m}")
        for i in range(4):
            k.e(f"v_pk_add_f32 {vr(vQK+2*i,2)}, {vr(vQK+2*i,2)}, {vr(vQK+8+2*i,2)}")
        for i in range(8):
            k.e(f"v_mul_f32 v{vQK+i}, v{vQK+i}, v{m}")
        for i in range(4):
            k.e(f"v_cvt_pk_bf16_f32 v{vQK+8+i}, v{vQK+2*i}, v{vQK+2*i+1}")
        k.e(f"s_mov_b64 exec, {sr(S_MLO,2)}")
        k.e(f"ds_write_b128 v{vOXw}, {vr(vQK+8,4)}")
        k.e("s_mov_b64 exec, -1")
        zero(vOA, 16)
        k.e("s_waitcnt lgkmcnt(0)")
        k.e("s_barrier")
        for tp in range(2):
            k.e(f"ds_read_b128 {vr(vQK+4*tp,4)}, v{vL16} offset:{OXB - MEMB + tp*1024}")
        zero(vOA+16, 16)
        k.e(f"s_lshl_b32 s{S_U2}, s{S_IDX}, 9")
        k.e(f"s_add_u32 s{S_U2}, s{S_U2}, s{S_PO}")
        k.e(f"s_add_u32 s{S_U2}, s{S_U2}, {PO_PC + par * 0x80000:#x}")
        k.e("s_waitcnt lgkmcnt(0)")
        k.e(f"v_add_u32 {T}, {WOH}, v{vWv}")

        def osrc(tile, tp):
            if tile < 4:
                return vr(WO0 + 16 * tile + 8 * tp, 8)
            i = 2 * (tile - 4) + tp
            return vr(vM + 8 * (i % 4), 8)

        def opair(p):
            for tile in (2 * p, 2 * p + 1):
                for tp in range(2):
                    smf(vOA + 4 * tile, vr(vQK + 4 * tp, 4), osrc(tile, tp))

        def ostore(p):
            swapadd(vOA + 8 * p, vOA + 8 * p + 4)
            k.e(f"buffer_store_dwordx4 {vr(vOA+8*p,4)}, v{vPst}, {ws}, s{S_U2} offen{hs}")
            if p < 3:
                k.e(f"s_add_u32 s{S_U2}, s{S_U2}, 0x8000")
        opair(2)
        for i in range(4, 8):
            for hf in range(2):
                k.e(f"ds_read_b128 {vr(vM+8*(i%4)+4*hf,4)}, {T} offset:{i*2048 + hf*1024}")
        opair(0)
        opair(1)
        k.e(f"s_add_u32 s{S_U3}, s{S_U2}, 0x10000")
        swapadd(vOA + 16, vOA + 20)
        k.e(f"buffer_store_dwordx4 {vr(vOA+16,4)}, v{vPst}, {ws}, s{S_U3} offen{hs}")
        k.e("s_waitcnt lgkmcnt(0)")
        opair(3)
        swapadd(vOA, vOA + 4)
        k.e(f"buffer_store_dwordx4 {vr(vOA,4)}, v{vPst}, {ws}, s{S_U2} offen{hs}")
        k.e(f"s_add_u32 s{S_U3}, s{S_U2}, 0x8000")
        swapadd(vOA + 8, vOA + 12)
        k.e(f"buffer_store_dwordx4 {vr(vOA+8,4)}, v{vPst}, {ws}, s{S_U3} offen{hs}")
        k.e(f"s_add_u32 s{S_U3}, s{S_U2}, 0x18000")
        swapadd(vOA + 24, vOA + 28)
        k.e(f"buffer_store_dwordx4 {vr(vOA+24,4)}, v{vPst}, {ws}, s{S_U3} offen{hs}")
        k.e(f"s_lshl_b32 s{S_U2}, s{S_IDX}, 14")
        k.e(f"s_add_u32 s{S_U2}, s{S_U2}, s{S_PO}")
        k.e(f"s_add_u32 s{S_U2}, s{S_U2}, {PO_PC + par * 0x80000:#x}")
        k.e(f"s_lshl_b32 s{S_U3}, s{S_NXT}, 13")
        k.e(f"s_lshl_b32 s{S_T0}, s{S_IDX}, 8")
        k.e(f"s_add_u32 s{S_U3}, s{S_U3}, s{S_T0}")
        k.e(f"s_add_u32 s{S_U3}, s{S_U3}, s{S_PO}")
        sh_addr(S_U0, S_S, 4, S_F)
        k.e(f"s_add_u32 s{S_U0}, s{S_U0}, {F_KM:#x}")
        lr = k.uid("L_ch_pr")
        lok = k.uid("L_ch_rok")
        k.lab(lr)
        for mm in range(4):
            k.e(f"buffer_load_dwordx4 {vr(vM+4*mm,4)}, v{vRd}, {ws}, s{S_U2} offen offset:{mm*512} sc1")
        k.tick()
        a = vM + 16
        k.e("s_waitcnt vmcnt(2)")
        k.e(f"v_pk_add_f32 {vr(a,2)}, {vr(vM,2)}, {vr(vM+4,2)}")
        k.e(f"v_pk_add_f32 {vr(a+2,2)}, {vr(vM+2,2)}, {vr(vM+6,2)}")
        k.e("s_waitcnt vmcnt(0)")
        k.e(f"v_pk_add_f32 {vr(a+4,2)}, {vr(vM+8,2)}, {vr(vM+12,2)}")
        k.e(f"v_pk_add_f32 {vr(a+6,2)}, {vr(vM+10,2)}, {vr(vM+14,2)}")
        k.e(f"v_pk_add_f32 {vr(a,2)}, {vr(a,2)}, {vr(a+4,2)}")
        k.e(f"v_pk_add_f32 {vr(a+2,2)}, {vr(a+2,2)}, {vr(a+6,2)}")
        k.nop(2)
        k.e(f"v_permlane32_swap_b32 v{a}, v{a+1}")
        k.e(f"v_permlane32_swap_b32 v{a+2}, v{a+3}")
        k.nop(1)
        k.e(f"v_add_f32 v{a}, v{a}, v{a+1}")
        k.e(f"v_add_f32 v{a+2}, v{a+2}, v{a+3}")
        k.nop(2)
        k.e(f"v_permlane16_swap_b32 v{a}, v{a+2}")
        k.nop(1)
        k.e(f"v_add_f32 v{a}, v{a}, v{a+2}")
        k.nop(2)
        k.e(f"v_add_f32_dpp v{a}, v{a}, v{a} row_ror:8 row_mask:0xf bank_mask:0xf")
        k.nop(2)
        k.e(f"v_mov_b32_dpp v{a+1}, v{a} quad_perm:[1,0,3,2] row_mask:0xf bank_mask:0xf")
        k.e(f"v_cmp_u_f32 vcc, v{a}, v{a}")
        k.e(f"s_cbranch_vccz {lok}")
        k.e(f"v_max3_u32 {T}, v{vM}, v{vM+1}, v{vM+2}")
        for i in range(3, 15, 2):
            k.e(f"v_max3_u32 {T}, {T}, v{vM+i}, v{vM+i+1}")
        k.e(f"v_max_u32 {T}, {T}, v{vM+15}")
        k.e(f"v_cmp_eq_u32 vcc, -1, {T}")
        k.e(f"s_cbranch_vccnz {lr}")
        k.lab(lok)
        k.e(f"v_cvt_pk_bf16_f32 v{a}, v{a}, v{a+1}")
        k.e(f"v_min_u32 v{a}, -2, v{a}")
        k.e("s_mov_b32 exec_lo, 0x00550055")
        k.e("s_mov_b32 exec_hi, 0x00550055")
        k.e(f"buffer_store_dword v{a}, v{vMst}, {ws}, s{S_U3} offen{hs}")
        k.e("s_mov_b64 exec, 1")
        k.e(f"buffer_store_dword v{vOne}, v{vFlo}, {ws}, s{S_U0} offen sc1")
        k.e("s_mov_b64 exec, -1")
        for mm in range(4):
            k.e(f"buffer_store_dwordx4 {vr(vNeg,4)}, v{vRd}, {ws}, s{S_U2} offen offset:{mm*512}{hs}")
        k.e(f"v_xor_b32 v{vKxR}, 0x2000, v{vKxR}")
        k.e(f"s_mov_b32 s{S_S}, s{S_NXT}")

    top = k.uid("L_ch_top")
    k.lab(top)
    body(0)
    body(1)
    k.e(f"s_cmp_lt_u32 s{S_S}, 64")
    k.e(f"s_cbranch_scc1 {top}")


def do_init(k):
    k.e("s_lshl_b32 s3, s2, 12")
    k.e("v_lshlrev_b32 v1, 4, v0")
    k.e("v_add_u32 v1, s3, v1")
    for i in range(4):
        k.e(f"v_mov_b32 v{4+i}, 0")
        k.e(f"v_mov_b32 v{8+i}, -1")
    assert FLAG_BYTES <= 0x100000
    k.e(f"s_mov_b32 s{S_T0}, {FLAGS:#x}")
    k.e(f"buffer_store_dwordx4 v[4:7], v1, {sr(S_WS,4)}, s{S_T0} offen sc1")
    for i in range(POISON_BYTES // 0x100000):
        k.e(f"s_mov_b32 s{S_T0}, {POISON + i * 0x100000:#x}")
        k.e(f"buffer_store_dwordx4 v[8:11], v1, {sr(S_WS,4)}, s{S_T0} offen sc1")


KD = """.section .rodata,"a"
.p2align 6
.amdhsa_kernel {name}
  .amdhsa_next_free_vgpr 512
  .amdhsa_next_free_sgpr 102
  .amdhsa_accum_offset 256
  .amdhsa_group_segment_fixed_size 0
  .amdhsa_kernarg_size 112
  .amdhsa_user_sgpr_count 2
  .amdhsa_user_sgpr_kernarg_segment_ptr 1
  .amdhsa_system_sgpr_workgroup_id_x 1
.end_amdhsa_kernel
"""


def entry(k, name):
    k.lines.append(f".globl {name}")
    k.lines.append(".p2align 8")
    k.lines.append(f".type {name},@function")
    k.lab(name)


def build_multi():
    k = K()
    launches = []
    names = []

    def stub(name, ngrid, layer, nidx, body_label, lds, idx2=None):
        entry(k, name)
        names.append(name)
        launches.append((name, ngrid, lds))
        k.prologue(ngrid)
        k.set_layer(layer)
        nparts = ngrid // nidx
        k.e(f"s_mov_b32 s{S_T0}, {-(-(1 << 32) // nidx):#x}")
        k.e(f"s_mul_hi_u32 s{S_S}, s2, s{S_T0}")
        k.e(f"s_mul_i32 s{S_T1}, s{S_S}, {nidx}")
        k.e(f"s_sub_u32 s{S_IDX}, s2, s{S_T1}")
        if idx2:
            k.e(f"s_lshr_b32 s{S_IDX2}, s{S_IDX}, 2")
            k.e(f"s_and_b32 s{S_IDX}, s{S_IDX}, 3")
        k.e(f"s_mov_b32 s{S_STEP}, {nparts}")
        k.e(f"s_mov_b32 s{S_END}, 64")
        k.e(f"s_branch {body_label}")

    entry(k, "init_kernel")
    names.append("init_kernel")
    launches.append(("init_kernel", 256, 0))
    k.prologue(256)
    do_init(k)
    k.e("s_endpgm")
    stub("ln0_kernel", 256, 0, 4, "B_ln0", 1024)
    for l in range(2):
        stub(f"s1_l{l}_kernel", 256, l, 32, "B_s1", 131072)
        entry(k, f"chain_l{l}_kernel")
        names.append(f"chain_l{l}_kernel")
        launches.append((f"chain_l{l}_kernel", 256, CHAIN_LDS))
        k.prologue(256)
        k.set_layer(l)
        k.e(f"s_getreg_b32 s{S_T0}, hwreg(HW_REG_XCC_ID)")
        k.e(f"s_and_b32 s{S_T0}, s{S_T0}, 15")
        k.e(f"s_cmp_lg_u32 s{S_T0}, 0")
        k.e("s_cbranch_scc1 L_exit")
        k.srd(S_A, P_DBG, 256)
        k.e("v_mov_b32 v1, 0")
        k.e("v_mov_b32 v2, 1")
        k.e(f"s_cmp_lg_u32 s{S_W}, 0")
        lw = k.uid("L_tk")
        k.e(f"s_cbranch_scc1 {lw}")
        k.e("s_mov_b64 exec, 1")
        k.e(f"buffer_atomic_add v2, v1, {sr(S_A,4)}, 0 offen sc0")
        k.e("s_waitcnt vmcnt(0)")
        k.e("ds_write_b32 v1, v2")
        k.e("s_waitcnt lgkmcnt(0)")
        k.e("s_mov_b64 exec, -1")
        k.lab(lw)
        k.e("s_barrier")
        k.e("ds_read_b32 v2, v1")
        k.e("s_waitcnt lgkmcnt(0)")
        k.e(f"v_readfirstlane_b32 s{S_IDX}, v2")
        k.e("s_nop 3")
        k.e(f"s_cmp_ge_u32 s{S_IDX}, 32")
        k.e("s_cbranch_scc1 L_exit")
        k.e("s_branch B_chain")
        stub(f"s2_l{l}_kernel", 256, l, 32, "B_s2", 131072)
        stub(f"s3_l{l}_kernel", 256, l, 16, "B_s3", 131072, idx2=True)
        stub(f"r3_l{l}_kernel", 256, l, 4, "B_r3", 1024)
        stub(f"s4_l{l}_kernel", 224, l, 14, "B_s4", 131072)
        stub(f"s5_l{l}_kernel", 256, l, 8, "B_s5", 131072, idx2=True)
        stub(f"r5_l{l}_kernel", 256, l, 4, "B_r5" if l == 0 else "B_r5f", 1024)
    for kind in ("ln0", "r3", "r5", "r5f"):
        k.lab(f"B_{kind}")
        role_R(k, kind)
        k.e("s_endpgm")
    for kind in ("s1", "s3", "s4", "s5"):
        k.lab(f"B_{kind}")
        role_gemm(k, kind)
        k.e("s_endpgm")
    k.lab("B_s2")
    role_s2(k)
    k.e("s_endpgm")
    k.lab("B_chain")
    role_chain(k)
    k.lab("L_exit")
    k.e("s_endpgm")
    head = "".join(f"; @launch kernel={n} grid=({g},1,1) block=(256,1,1) lds={lds}\n" for n, g, lds in launches)
    head += '.amdgcn_target "amdgcn-amd-amdhsa--gfx950"\n.text\n'
    return head + k.text() + "".join(KD.format(name=n) for n in names)


if __name__ == "__main__":
    mode = sys.argv[1] if len(sys.argv) > 1 else "multi"
    out = sys.argv[2] if len(sys.argv) > 2 else f"cdna_kernels/{NAME}.s"
    txt = {"multi": build_multi}[mode]()
    open(out, "w").write(txt)
    print("wrote", out, len(txt), "bytes")
```
